```python
import torch

def _softmax(x, axis=-1):
    return torch.softmax(x, dim=axis)
def _gelu(x):
    return torch.nn.functional.gelu(x, approximate="tanh")
def _silu(x):
    return torch.nn.functional.silu(x)
def _sigmoid(x):
    return torch.sigmoid(x)
def _layernorm(x, axis=-1, eps=1e-5):
    m = x.mean(dim=axis, keepdim=True)
    v = x.var(dim=axis, keepdim=True, unbiased=False)
    return (x - m) / torch.sqrt(v + eps)
def _scatter_add(tgt, idx, src, axis=0):
    return tgt.clone().index_add_(axis, idx, src)
def _segment_sum(src, seg, n):
    out = torch.zeros((n,) + src.shape[1:], dtype=src.dtype)
    return out.index_add_(0, seg, src)
def _pad(x, pw):
    flat = tuple(v for pair in reversed(pw) for v in pair)
    return torch.nn.functional.pad(x, flat)

kernel_name = 'standalone__linear_kernel_rfa__prompt'

def setup_inputs():

    _w = (lambda a: (lambda t: t.to(torch.bfloat16) if t.is_floating_point() else t)(torch.as_tensor(a)))
    B, H, Sq, Sk, D, M = 1, 32, 2048, 2048, 192, 16
    return {
        "q": _w((lambda *s: torch.randn(*s, dtype=torch.bfloat16) * 0.1)(B, H, Sq, D)),
        "k": _w((lambda *s: torch.randn(*s, dtype=torch.bfloat16) * 1.6)(B, H, Sk, D)),
        "v": _w((lambda *s: torch.randn(*s, dtype=torch.bfloat16) * 1.6)(B, H, Sk, D)),
        "omega": _w((lambda *s: torch.randn(*s, dtype=torch.bfloat16) * 1.6)(M, D)),
    }

def reference(q, k, v, omega):
    d = q.shape[-1]
    m = omega.shape[0]
    scale = float(d) ** -0.25
    qs = q * scale
    ks = k * scale
    q_proj = torch.einsum("bhsd,md->bhsm", qs, omega)
    k_proj = torch.einsum("bhsd,md->bhsm", ks, omega)
    q_sq = 0.5 * torch.einsum("bhsd,bhsd->bhs", qs, qs)[..., None]
    k_sq = 0.5 * torch.einsum("bhsd,bhsd->bhs", ks, ks)[..., None]
    inv_sqrt_m = float(m) ** -0.5
    phi_q = torch.exp(q_proj - q_sq) * inv_sqrt_m + 1e-6
    phi_k = torch.exp(k_proj - k_sq) * inv_sqrt_m + 1e-6
    kv = torch.einsum("bhsm,bhsd->bhmd", phi_k, v)
    z  = torch.einsum("bhsm->bhm", phi_k)
    num = torch.einsum("bhqm,bhmd->bhqd", phi_q, kv)
    den = torch.einsum("bhqm,bhm->bhq", phi_q, z)[..., None] + 1e-6
    return num / den
```

```python
import re

TRANS = ("v_exp_f32","v_log_f32","v_rcp_f32","v_rsq_f32","v_sqrt_f32","v_sin_f32","v_cos_f32","v_rcp_iflag_f32")

def regs_of(tok):
    tok = tok.strip()
    tok = tok.lstrip('-')
    if tok.startswith('abs(') or tok.startswith('|'):
        tok = tok.replace('abs(', '').replace(')', '').replace('|', '')
    m = re.fullmatch(r'([vsa])(\d+)', tok)
    if m: return [(m.group(1), int(m.group(2)))]
    m = re.fullmatch(r'([vsa])\[(\d+):(\d+)\]', tok)
    if m: return [(m.group(1), i) for i in range(int(m.group(2)), int(m.group(3))+1)]
    if tok == 'vcc': return [('s', 106), ('s', 107)]
    if tok == 'vcc_lo': return [('s', 106)]
    if tok == 'vcc_hi': return [('s', 107)]
    if tok == 'm0': return [('s', 124)]
    if tok == 'exec': return [('s', 126), ('s', 127)]
    return []

def split_ops(rest):
    out = []; cur = ''; depth = 0
    for ch in rest:
        if ch == '[': depth += 1
        if ch == ']': depth -= 1
        if ch == ',' and depth == 0:
            out.append(cur.strip()); cur = ''
        else: cur += ch
    if cur.strip(): out.append(cur.strip())
    return out

class Ins:
    def __init__(self, text):
        self.text = text
        t = text.split(';')[0].strip()
        parts = t.split(None, 1)
        self.op = parts[0]
        rest = parts[1] if len(parts) > 1 else ''
        ops = split_ops(rest)
        self.mods = ''
        if ops:
            last = ops[-1].split(None, 1)
            ops[-1] = last[0]
            if len(last) > 1: self.mods = last[1]
        self.ops = ops
        op = self.op
        self.is_mfma = op.startswith('v_mfma')
        self.is_valu = op.startswith('v_') and not self.is_mfma
        self.is_salu = op.startswith('s_')
        self.is_ds = op.startswith('ds_')
        self.is_vmem = op.startswith('buffer_') or op.startswith('global_') or op.startswith('flat_')
        self.is_trans = any(op.startswith(x) for x in TRANS)
        self.is_dl = op.startswith('v_dot')
        self.is_dma = self.is_vmem and re.search(r'\blds\b', self.mods) is not None
        self.dpp = ('quad_perm' in self.mods or 'row_' in self.mods or 'wave_' in self.mods)
        R = [regs_of(o) for o in ops]
        self.wr = []; self.rd = []
        self.srcC = []; self.srcAB = []
        self.store_data = []
        if self.is_mfma:
            self.wr = R[0]; self.srcAB = R[1] + R[2]; self.srcC = R[3]; self.rd = self.srcAB + self.srcC
            if '16x16x4_f32' in op: self.passes = 8; self.kind = 'sgemm'
            elif '32x32x2_f32' in op: self.passes = 16; self.kind = 'sgemm'
            elif '32x32' in op: self.passes = 8; self.kind = 'xdl'
            elif '16x16' in op: self.passes = 4; self.kind = 'xdl'
            else: raise ValueError(op)
        elif self.is_valu:
            if op.startswith('v_cmp'):
                self.wr = R[0]; self.rd = sum(R[1:], [])
            elif op.startswith('v_permlane') and 'swap' in op:
                self.wr = R[0] + R[1]; self.rd = R[0] + R[1]
            elif op.startswith(('v_add_co', 'v_sub_co', 'v_addc_co', 'v_subb_co', 'v_subrev_co')):
                self.wr = R[0] + R[1]; self.rd = sum(R[2:], [])
            elif op.startswith(('v_fmac', 'v_dot2c', 'v_writelane', 'v_pk_fmac')):
                self.wr = R[0]; self.rd = sum(R, [])
            elif op == 'v_nop':
                pass
            else:
                self.wr = R[0]; self.rd = sum(R[1:], [])
                if op.startswith('v_cndmask') and len(ops) == 3: self.rd += regs_of('vcc')
            if self.is_dl:
                if op.startswith('v_dot2c'):
                    self.srcC = R[0]; self.srcAB = R[1] + R[2]
                else:
                    self.srcC = R[3]; self.srcAB = R[1] + R[2]
        elif self.is_ds:
            if op.startswith(('ds_read', 'ds_bpermute', 'ds_permute', 'ds_swizzle')) or '_rtn' in op:
                self.wr = R[0]; self.rd = sum(R[1:], [])
            else:
                self.rd = sum(R, [])
        elif self.is_vmem:
            if self.is_dma:
                self.rd = sum(R, []) + regs_of('m0')
            elif '_load' in op:
                self.wr = R[0]; self.rd = sum(R[1:], [])
            elif '_store' in op:
                self.rd = sum(R, [])
                if op.startswith('buffer_'): self.store_data = R[0]
                else: self.store_data = R[1]
                if not (op.endswith('x3') or op.endswith('x4')): self.store_data = []
            elif '_atomic' in op:
                self.rd = sum(R, [])
                if 'sc0' in self.mods: self.wr = R[0]
        elif self.is_salu:
            if op.startswith(('s_cmp', 's_cbranch', 's_branch', 's_waitcnt', 's_nop', 's_barrier', 's_sleep', 's_setprio', 's_endpgm', 's_bitcmp')):
                self.rd = sum(R, [])
            elif op.startswith('s_atomic'):
                self.rd = sum(R, []); self.wr = R[0]
            else:
                self.wr = R[0] if R else []; self.rd = sum(R[1:], [])
                if 'saveexec' in op: self.wr = self.wr + regs_of('exec')
    def states(self):
        if self.op == 's_nop': return int(self.ops[0], 0) + 1
        return 1

def need(p, c):
    n = 0
    pw = set(p.wr); cr = set(c.rd); cw = set(c.wr)
    pwv = {r for r in pw if r[0] in 'va'}; pws = {r for r in pw if r[0] == 's'}
    if p.is_valu:
        if c.is_mfma and pwv & cr: n = max(n, 3 if p.is_dl else 2)
        if p.is_trans and c.is_valu and not c.is_trans and pwv & cr: n = max(n, 1)
        if p.is_trans and (c.is_vmem or c.is_ds) and pwv & cr: n = max(n, 1)
        if c.is_valu and c.op.startswith(('v_readlane', 'v_readfirstlane')) and pwv & cr: n = max(n, 1)
        if c.is_valu and c.op.startswith('v_permlane') and pwv & cr: n = max(n, 2)
        if c.is_valu and c.dpp and pwv & cr: n = max(n, 2)
        if pws:
            if c.is_valu and pws & cr:
                n = max(n, 4 if c.op.startswith(('v_readlane', 'v_writelane')) else 2)
            if c.is_vmem and pws & cr: n = max(n, 5)
            if c.is_salu and pws & cr: n = max(n, 1)
            if ('s', 126) in pws and (c.is_mfma or c.dpp): n = max(n, 5)
        if p.is_dl:
            if c.op == p.op:
                if pwv & set(c.srcAB): n = max(n, 3)
            elif pwv & (cr | cw): n = max(n, 3)
    if p.is_mfma:
        P = p.passes
        if p.kind == 'xdl':
            tv = {2: 5, 4: 8, 8: 12, 16: 20}[P]; tc = {2: 4, 4: 6, 8: 10, 16: 18}[P]
        else:
            tv = {2: 4, 4: 6, 8: 10, 16: 18}[P]; tc = {2: 2, 4: 4, 8: 8, 16: 16}[P]
        if c.is_mfma:
            if pwv & set(c.srcAB): n = max(n, tv)
            if pwv & set(c.srcC):
                same = (c.srcC == p.wr and c.passes == p.passes and c.kind == p.kind and c.op == p.op)
                if not same: n = max(n, tc)
                elif P == 2: n = max(n, 2)
            elif pwv & cw:
                n = max(n, tc)
        else:
            if pwv & (cr | cw): n = max(n, tv)
        if p.kind == 'xdl' and c.is_valu and set(p.srcC) & cw:
            n = max(n, {2: 1, 4: 3, 8: 7, 16: 15}[P])
    if p.is_salu and ('s', 124) in pw and c.is_dma: n = max(n, 1)
    if p.store_data and set(p.store_data) & cw:
        n = max(n, 2)
    return n

class Asm:
    def __init__(self):
        self.lines = []
        self.hist = []
        self.snap = {}
        self.nops = 0
        self.maxv = -1; self.maxs = -1
    def raw(self, text):
        self.lines.append(text)
    def comment(self, text):
        self.lines.append('  ; ' + text)
    def _age(self, k):
        for h in self.hist: h[1] += k
        self.hist = [h for h in self.hist if h[1] < 24]
    def __call__(self, text):
        for line in text.strip().split('\n'):
            line = line.strip()
            if not line or line.startswith(';'):
                if line: self.lines.append('  ' + line)
                continue
            if line.endswith(':'):
                self.label(line[:-1]); continue
            ins = Ins(line)
            for r in ins.wr + ins.rd:
                if r[0] == 'v': self.maxv = max(self.maxv, r[1])
                if r[0] == 's' and r[1] < 102: self.maxs = max(self.maxs, r[1])
            pad = 0
            for p, age in self.hist:
                pad = max(pad, need(p, ins) - age)
            while pad > 0:
                k = min(pad, 16)
                self.lines.append('  s_nop %d' % (k - 1)); self.nops += 1
                self._age(k); pad -= k
            self.lines.append('  ' + line)
            self._age(ins.states())
            self.hist.append([ins, 0])
            if ins.op.startswith(('s_cbranch', 's_branch')):
                self.snap.setdefault(ins.ops[0], []).append([[p, a] for p, a in self.hist])
                if ins.op == 's_branch': self.hist = []
            if ins.op == 's_endpgm': self.hist = []
    def label(self, name):
        for s in self.snap.get(name, []):
            self.hist += [[p, a] for p, a in s]
        self.lines.append(name + ':')
    def text(self):
        return '\n'.join(self.lines) + '\n'
```

```python
import sys
sys.path.insert(0, 'gen')
from asmlib import Asm
KN = "standalone__linear_kernel_rfa__prompt_kernel"
HEADER = open('standalone__linear_kernel_rfa__prompt.s.ref').read().split('; Override launch')[0]

TB = 25165824
LDS_V = 0; LDS_KS = 98304; LDS_PHI = 147456; LDS_OM = 155648; LDS_CNT = 161792; LDS_Z = 161856
LDS_TOTAL = 161920
LDS_KVF = 0
STAMP_BASE = 0x800000
WS_HEAD = 131072; WS_FIN = 98304; WS_Z = 106496
C_OM, C_1, C_2, C_3 = 0, 4, 8, 12
SQ, SK, SV, SOM, SOUT, SDBG, SWS = 8, 12, 16, 20, 24, 28, 32
def srd(b): return f"s[{b}:{b+3}]"
def vr(b, n): return f"v[{b}:{b+n-1}]" if n > 1 else f"v{b}"

def gen(ld="nt", st="", qdepth=4, stamps=False, round_num=True, dry=True, xcdmap=True, scalar_hs=False, poll_sleep=0):
    a = Asm()
    a.raw(HEADER.rstrip('\n'))
    a.raw(f"; @launch grid=(256,1,1) block=(1024,1,1) lds={LDS_TOTAL}")
    a.raw('.amdgcn_target "amdgcn-amd-amdhsa--gfx950"')
    a.raw(".text"); a.raw(f".globl {KN}"); a.raw(".p2align 8"); a.raw(f".type {KN},@function"); a.raw(f"{KN}:")
    vLane, vA0, vA1, vOA0, vOA1, vLin, vCnt, vT, vStamp, vOne = 1, 5, 6, 7, 8, 9, 10, 11, 12, 13
    vOff = [2, 3, 4]
    lab = [0]
    def newlab(p):
        lab[0] += 1; return f"L_{p}{lab[0]}"
    def stamp(k):
        if not stamps: return
        a(f"s_memrealtime s[60:61]\ns_waitcnt lgkmcnt(0)\nv_writelane_b32 v{vStamp}, s60, {k}")
    a("s_cmp_ge_u32 s2, 256\ns_cbranch_scc1 L_end")
    for i, b in enumerate((SQ, SK, SV, SOM, SOUT, SDBG, SWS)):
        a(f"s_load_dwordx2 s[{b}:{b+1}], s[0:1], {8*i}")
    a(f"v_lshrrev_b32 v{vT}, 6, v0")
    a(f"v_and_b32 v{vLane}, 63, v0")
    a(f"v_readfirstlane_b32 s3, v{vT}")
    for b, sz in ((SQ, TB), (SK, TB), (SV, TB), (SOM, 6144), (SOUT, TB), (SDBG, 256), (SWS, 268435456)):
        a(f"s_mov_b32 s{b+2}, {sz}\ns_mov_b32 s{b+3}, 0x00020000")
    if xcdmap:
        a("s_and_b32 s37, s2, 7\ns_lshl_b32 s37, s37, 2\ns_bfe_u32 s38, s2, 0x20003\ns_add_u32 s37, s37, s38")
        a("s_lshr_b32 s38, s2, 5")
    else:
        a("s_lshr_b32 s37, s2, 3\ns_and_b32 s38, s2, 7")
    a("s_lshl_b32 s36, s37, 3\ns_add_u32 s36, s36, s38\ns_mul_i32 s36, s36, 98304")
    a(f"v_lshlrev_b32 v{vLin}, 4, v{vLane}")
    a(f"v_lshrrev_b32 v{vT}, 3, v{vLane}\nv_mul_u32_u24 v{vT}, 43, v{vT}")
    for k in range(3):
        if k: a(f"v_add_u32 v{vOff[k]}, {344*k}, v{vT}\nv_lshrrev_b32 v{vOff[k]}, 3, v{vOff[k]}")
        else: a(f"v_lshrrev_b32 v{vOff[k]}, 3, v{vT}")
        a(f"v_and_b32 v{vOff[k]}, 0x60, v{vOff[k]}\nv_xor_b32 v{vOff[k]}, v{vOff[k]}, v{vLin}")
    if stamps:
        a(f"v_mov_b32 v{vStamp}, 0\ns_mov_b32 s62, 0\ns_mov_b32 s63, 0")
    a("s_and_b32 s39, s3, 7")
    a("s_mul_i32 s40, s39, 12288\ns_add_u32 s40, s40, s36")
    a(f"s_mul_i32 s41, s39, 6144\ns_add_u32 s41, s41, {LDS_KS}")
    a("s_lshl_b32 s49, s37, 17")
    a("s_cmp_ge_u32 s3, 8")
    a("s_waitcnt lgkmcnt(0)")
    stamp(0)
    if stamps: a("s_cmp_ge_u32 s3, 8")
    a("s_cbranch_scc1 L_qwave")

    def common_addrs():
        a("s_mov_b32 s44, 0x3e898b82\ns_mov_b32 s45, 0x3e898b82\ns_mov_b32 s46, 0xffff0000")
        a(f"v_and_b32 v{vT}, 15, v{vLane}")
        a(f"v_lshrrev_b32 v{vA1}, 4, v{vLane}")
        a(f"v_and_b32 v{vA0}, 6, v{vLane}")
        a(f"v_xor_b32 v{vA0}, v{vA0}, v{vA1}")
        a(f"v_lshlrev_b32 v{vA0}, 4, v{vA0}")
        a(f"v_mul_u32_u24 v{vT}, 384, v{vT}")
        a(f"v_add_u32 v{vA0}, v{vA0}, v{vT}")
        a(f"v_xor_b32 v{vA1}, 64, v{vA0}")
        a(f"v_add_u32 v{vOA0}, {LDS_OM}, v{vA0}\nv_add_u32 v{vOA1}, {LDS_OM}, v{vA1}")
        a(f"v_add_u32 v{vA0}, s41, v{vA0}\nv_add_u32 v{vA1}, s41, v{vA1}")
        a(f"v_mov_b32 v{vCnt}, {LDS_CNT}")
        a(f"v_mov_b32 v{vOne}, 1.0")
        a(f"v_add_u32 v14, s41, v{vLin}")
    def read_frags(dst, A0, A1):
        for j in range(6):
            a(f"ds_read_b128 {vr(dst+4*j,4)}, v{A1 if j&1 else A0} offset:{128*(j>>1)}")
    def dma_tile(S, soff, m0base, n, flag):
        for i in range(n):
            if i % 4 == 0:
                if i == 0:
                    a(f"s_mov_b32 m0, {m0base}"); so = soff
                else:
                    a(f"s_add_u32 s42, {soff}, {1024*i}\ns_add_u32 m0, m0, 4096"); so = "s42"
            a(f"buffer_load_dwordx4 v{vOff[i%3]}, {srd(S)}, {so} offen offset:{1024*(i%4)} {flag} lds")
    def signal(off, guard=False):
        L = newlab("sg")
        if guard: a(f"s_cbranch_execz {L}")
        a(f"s_mov_b64 exec, 1\nv_mov_b32 v{vT}, 1\nds_add_u32 v{vCnt}, v{vT} offset:{off}\ns_mov_b64 exec, -1")
        if guard: a(f"{L}:")
    def wait_cnt(off, target, guard=False):
        L = newlab("w")
        if guard: a(f"s_cbranch_execz {L}_d")
        a(f"{L}:")
        a(f"ds_read_b32 v{vT}, v{vCnt} offset:{off}\ns_waitcnt lgkmcnt(0)\nv_readfirstlane_b32 s47, v{vT}")
        a(f"s_cmp_ge_u32 s47, {target}\ns_cbranch_scc1 {L}_d\ns_sleep 1\ns_branch {L}")
        a(f"{L}_d:")

    LAND = 20
    FR, OMF = 68, 92
    TMP, SQa, RES = 116, 124, 126
    P, S = 20, 24
    KB, ZB = 92, 18
    vO4, vO2, vZa = 15, 16, 17

    a("s_setprio 2")
    a("s_cmp_ge_u32 s39, 4\ns_cbranch_scc1 L_kv_late")
    a("s_cmp_ge_u32 s39, 2\ns_cbranch_scc1 L_kv_ld")
    a("s_cmp_eq_u32 s39, 1\ns_cbranch_scc1 L_kv_clear")
    dma_tile(SOM, "0", f"{LDS_OM}", 6, "")
    a("s_branch L_kv_ld")
    a("L_kv_clear:")
    a(f"v_lshrrev_b32 v{vT}, 5, v{vLane}\nv_mul_u32_u24 v{vT}, 3584, v{vT}\nv_add_u32 v19, v{vT}, v{vLin}")
    for r in range(4): a(f"v_mov_b32 v{20+r}, -1")
    a("s_lshl_b32 s42, s38, 9\ns_add_u32 s42, s42, s49")
    for u in range(12):
        a(f"buffer_store_dwordx4 v[20:23], v19, {srd(SWS)}, s42 offen sc1")
        if u < 11: a("s_add_u32 s42, s42, 8192")
    a(f"s_lshl_b32 s42, s38, 10\ns_add_u32 s42, s42, s49\ns_add_u32 s42, s42, {WS_FIN}")
    a(f"buffer_store_dwordx4 v[20:23], v{vLin}, {srd(SWS)}, s42 offen sc1")
    a(f"s_lshl_b32 s42, s38, 6\ns_add_u32 s42, s42, s49\ns_add_u32 s42, s42, {WS_Z}")
    a(f"s_mov_b64 exec, 15\nbuffer_store_dwordx4 v[20:23], v{vLin}, {srd(SWS)}, s42 offen sc1\ns_mov_b64 exec, -1")
    a("s_branch L_kv_ld")
    a("L_kv_late:")
    a("s_barrier")
    a("L_kv_ld:")
    dma_tile(SK, "s40", "s41", 6, ld)
    a("s_add_u32 s42, s40, 6144\ns_add_u32 s43, s40, 10240")
    for i in range(6):
        a(f"buffer_load_dwordx4 {vr(LAND+24+4*i,4)}, v{vOff[i%3]}, {srd(SK)}, {'s42' if i<4 else 's43'} offen offset:{1024*(i%4)} {ld}")
    a("s_cmp_ge_u32 s39, 4\ns_cbranch_scc1 L_kv_nob")
    a("s_barrier")
    a("L_kv_nob:")
    a("s_setprio 0")
    common_addrs()
    stamp(1)
    a("s_cmp_lg_u32 s39, 0\ns_cbranch_scc1 L_kv_noom")
    a("s_waitcnt vmcnt(12)")
    signal(C_OM)
    a("L_kv_noom:")
    wait_cnt(C_OM, 1)
    a("s_waitcnt vmcnt(6)")
    stamp(2)
    a("s_call_b64 s[64:65], L_phi")
    a(f"v_mov_b32 v28, v{RES}\nv_mov_b32 v29, v{RES+1}")
    a("s_waitcnt vmcnt(0)")
    stamp(10)
    for i in range(6):
        a(f"ds_write_b128 v14, {vr(LAND+24+4*i,4)} offset:{1024*i}")
    a("s_cmp_lg_u32 s39, 1\ns_cbranch_scc1 L_kv_noat")
    a("s_lshl_b32 s42, s37, 3")
    if scalar_hs:
        a(f"s_mov_b32 s43, 1\ns_atomic_add s43, s[{SDBG}:{SDBG+1}], s42")
    else:
        a(f"v_mov_b32 v{vT}, 1\ns_mov_b64 exec, 1\nbuffer_atomic_add v{vT}, off, {srd(SDBG)}, s42 sc1\ns_mov_b64 exec, -1")
    a("L_kv_noat:")
    a("s_call_b64 s[64:65], L_phi")
    a(f"v_mov_b32 v30, v{RES}\nv_mov_b32 v31, v{RES+1}")
    a(f"s_lshl_b32 s42, s39, 10\ns_add_u32 s42, s42, {LDS_PHI}")
    a(f"v_add_u32 v14, s42, v{vLin}")
    a(f"ds_write_b128 v14, v[28:31]")
    stamp(3)
    a("s_cmp_eq_u32 s39, 1\ns_cbranch_scc1 L_kv_nosig")
    signal(C_1)
    a("L_kv_nosig:")
    vB0, vB1, vPh, vPub, vF = 14, 15, 16, 19, 17
    AF, BF, ACC = 20, 52, 116
    a(f"v_lshrrev_b32 v{vT}, 2, v{vLane}")
    a(f"v_mul_u32_u24 v{vB0}, 384, v{vT}")
    a(f"v_bfe_u32 v{vT}, v{vLane}, 3, 2")
    a(f"v_xor_b32 v{vT}, s39, v{vT}")
    a(f"v_lshl_add_u32 v{vB0}, v{vT}, 5, v{vB0}")
    a(f"v_and_b32 v{vT}, 3, v{vLane}")
    a(f"v_lshl_add_u32 v{vB0}, v{vT}, 3, v{vB0}")
    a(f"v_add_u32 v{vB1}, 49152, v{vB0}")
    a(f"v_add_u32 v{vPh}, {LDS_PHI}, v{vLin}")
    a(f"v_lshrrev_b32 v{vT}, 5, v{vLane}\nv_mul_u32_u24 v{vT}, 3584, v{vT}\nv_add_u32 v{vPub}, v{vT}, v{vLin}")
    a("s_lshl_b32 s54, s39, 13\ns_lshl_b32 s42, s38, 9\ns_add_u32 s54, s54, s42\ns_add_u32 s54, s54, s49\ns_add_u32 s55, s54, 65536")
    a("s_cmp_ge_u32 s39, 4\ns_cbranch_scc1 L_adr_hi")
    for b in range(2):
        d = 17 + b
        a(f"s_mul_i32 s42, s39, 6\ns_add_u32 s42, s42, {3*b}")
        a(f"v_lshrrev_b32 v20, 4, v{vLane}\nv_add_u32 v20, s42, v20")
        a(f"v_lshrrev_b32 v21, 1, v20")
        a(f"v_and_b32 v22, 1, v20\nv_bfe_u32 v23, v{vLane}, 3, 1\nv_lshl_add_u32 v22, v22, 1, v23")
        a(f"v_and_b32 v23, 7, v{vLane}")
        a(f"v_and_b32 v24, 3, v23\nv_lshlrev_b32 v24, 10, v24\nv_lshrrev_b32 v25, 2, v23\nv_lshl_add_u32 v25, v21, 1, v25\nv_lshl_add_u32 v24, v25, 4, v24")
        a(f"v_and_b32 v26, 1, v23\nv_lshlrev_b32 v26, 10, v26\nv_lshrrev_b32 v27, 1, v23\nv_lshl_add_u32 v27, v21, 2, v27\nv_lshl_add_u32 v26, v27, 4, v26\nv_add_u32 v26, {4096-512}, v26")
        a(f"v_cmp_gt_u32 vcc, 8, v21\nv_cndmask_b32 v24, v26, v24, vcc")
        a(f"v_lshl_add_u32 v{d}, v22, 8, v24")
        if LDS_KVF: a(f"v_add_u32 v{d}, {LDS_KVF}, v{d}")
    a(f"s_lshl_b32 s50, s39, 11\ns_add_u32 s50, s50, s49\ns_add_u32 s50, s50, {WS_FIN}")
    a("s_branch L_adr_done")
    a("L_adr_hi:")
    a(f"v_lshrrev_b32 v{vT}, 4, v{vLane}\nv_lshlrev_b32 v17, 3, v{vT}\nv_add_u32 v17, {LDS_Z}, v17")
    a(f"v_lshlrev_b32 v18, 3, v{vLane}")
    a("s_mul_i32 s50, s38, 3\ns_add_u32 s50, s50, s39\ns_sub_u32 s50, s50, 5\ns_lshl_b32 s50, s50, 12\ns_add_u32 s50, s50, s49")
    a(f"s_lshl_b32 s51, s38, 2\ns_add_u32 s51, s51, s39\ns_sub_u32 s51, s51, 5\ns_lshl_b32 s51, s51, 8\ns_add_u32 s51, s51, s49\ns_add_u32 s51, s51, {WS_FIN}")
    a("s_cmp_lg_u32 s39, 4\ns_cbranch_scc1 L_adr_done")
    a(f"v_lshlrev_b32 v18, 2, v{vLane}")
    a(f"s_add_u32 s50, s49, {WS_Z}\ns_lshl_b32 s55, s38, 6\ns_add_u32 s55, s55, s50")
    a("L_adr_done:")
    if dry:
        a("s_mov_b64 exec, 0")
        a("s_cmp_lg_u32 s39, 2\ns_cbranch_scc1 L_xchg")
        a("s_call_b64 s[64:65], L_out")
        a("s_branch L_xchg")
        a("L_dry_ret:")
        a("s_mov_b64 exec, -1")
    stamp(11)
    a("s_cmp_lg_u32 s39, 1\ns_cbranch_scc1 L_noclr")
    a("s_lshl_b32 s42, s37, 3\ns_mov_b32 s48, 0x100000")
    a("L_clr:")
    if scalar_hs:
        a(f"s_load_dword s47, s[{SDBG}:{SDBG+1}], s42 glc\ns_waitcnt lgkmcnt(0)")
    else:
        a(f"buffer_load_dword v{vT}, off, {srd(SDBG)}, s42 sc1\ns_waitcnt vmcnt(0)\nv_readfirstlane_b32 s47, v{vT}")
    a("s_cmp_ge_u32 s47, 8\ns_cbranch_scc1 L_clr_d\ns_sub_u32 s48, s48, 1\ns_cbranch_scc0 L_clr")
    a("L_clr_d:")
    signal(C_1)
    stamp(12)
    a("L_noclr:")
    for r in range(4): a(f"v_mov_b32 v{124+r}, 0x3f803f80")
    a("s_setprio 2")
    wait_cnt(C_1, 16)
    a("L_xchg:")
    stamp(4)
    for kb in range(8): a(f"ds_read_b128 {vr(AF+4*kb,4)}, v{vPh} offset:{1024*kb}")
    def tr_reads(dst, extra):
        for kb in range(8):
            for hf in range(2):
                a(f"ds_read_b64_tr_b16 {vr(dst+4*kb+2*hf,2)}, v{vB1 if kb>=4 else vB0} offset:{(kb&3)*12288+hf*6144+extra}")
    tr_reads(BF, 0)
    a("s_cmp_ge_u32 s39, 4\ns_cbranch_scc1 L_p1b_one")
    G = 20
    def poll(loads, nregs, mask=None, cnt="s62"):
        L = newlab("g")
        a(f"s_cbranch_execz {L}_c")
        if mask: a(f"s_mov_b64 exec, {mask}")
        a("s_mov_b32 s48, 0x100000")
        a(f"{L}:")
        for t in loads: a(t)
        a("s_waitcnt vmcnt(0)")
        a(f"{L}_c:")
        if nregs == 2:
            a(f"v_max_u32 v{vT}, v{G}, v{G+1}")
        else:
            a(f"v_max_u32 v{vT}, v{G}, v{G+1}")
            for i in range(2, nregs, 2): a(f"v_max3_u32 v{vT}, v{G+i}, v{G+i+1}, v{vT}")
        a(f"v_cmp_eq_u32 vcc, -1, v{vT}\ns_nop 1\ns_cmp_eq_u64 vcc, 0\ns_cbranch_scc1 {L}_d")
        if stamps: a(f"s_add_u32 {cnt}, {cnt}, 1")
        if poll_sleep: a(f"s_sleep {poll_sleep}")
        a(f"s_sub_u32 s48, s48, 1\ns_cbranch_scc0 {L}")
        a(f"{L}_d:")
    def endpath():
        if dry: a("s_cbranch_execz L_dry_ret")
        a("s_branch L_fin")
    tr_reads(BF+32, 256)
    a("s_waitcnt lgkmcnt(0)")
    for kb in range(8):
        for u in range(2):
            a(f"v_mfma_f32_16x16x32_bf16 {vr(ACC+4*u,4)}, {vr(AF+4*kb,4)}, {vr(BF+32*u+4*kb,4)}, {vr(ACC+4*u,4) if kb else 0}")
    for r in range(8): a(f"v_min_u32 v{ACC+r}, -2, v{ACC+r}")
    a("s_cbranch_execz L_sk1")
    for u in range(2):
        a(f"buffer_store_dwordx4 {vr(ACC+4*u,4)}, v{vPub}, {srd(SWS)}, s{54+u} offen sc1")
    signal(C_2)
    stamp(5)
    wait_cnt(C_2, 8)
    a("s_mov_b32 s52, -1\ns_mov_b32 s53, 0xffff")
    a("L_sk1:")
    poll([f"buffer_load_dwordx4 {vr(G+4*b,4)}, v{vLin}, {srd(SWS)}, s50 offen offset:{1024*b} sc1" for b in range(2)], 8, mask="s[52:53]")
    stamp(6)
    a(f"ds_write_b128 v17, {vr(G,4)}\nds_write_b128 v18, {vr(G+4,4)}")
    signal(C_3, guard=True)
    stamp(7)
    endpath()
    a("L_p1b_one:")
    a("s_cmp_lg_u32 s39, 4\ns_waitcnt lgkmcnt(0)\ns_cbranch_scc1 L_p1b_single")
    for kb in range(8):
        a(f"v_mfma_f32_16x16x32_bf16 {vr(ACC,4)}, {vr(AF+4*kb,4)}, {vr(BF+4*kb,4)}, {vr(ACC,4) if kb else 0}")
        a(f"v_mfma_f32_16x16x32_bf16 {vr(ACC+4,4)}, {vr(AF+4*kb,4)}, v[124:127], {vr(ACC+4,4) if kb else 0}")
    for r in range(8): a(f"v_min_u32 v{ACC+r}, -2, v{ACC+r}")
    a("s_cbranch_execz L_sk2")
    a(f"buffer_store_dwordx4 {vr(ACC,4)}, v{vPub}, {srd(SWS)}, s54 offen sc1")
    a(f"s_mov_b32 s52, 0x00010001\ns_mov_b32 s53, 0x00010001\ns_mov_b64 exec, s[52:53]")
    a(f"buffer_store_dwordx4 {vr(ACC+4,4)}, v{vLane}, {srd(SWS)}, s55 offen sc1")
    signal(C_2)
    stamp(5)
    a("L_sk2:")
    poll([f"buffer_load_dword v{G+b}, v18, {srd(SWS)}, s50 offen offset:{256*b} sc1" for b in range(2)], 2)
    stamp(6)
    a(f"v_mfma_f32_16x16x4_f32 {vr(ACC,4)}, v{G}, v{vOne}, 0")
    a(f"v_mfma_f32_16x16x4_f32 {vr(ACC,4)}, v{G+1}, v{vOne}, {vr(ACC,4)}")
    a(f"v_cvt_pk_bf16_f32 v{ACC+4}, v{ACC}, v{ACC+1}\nv_cvt_pk_bf16_f32 v{ACC+5}, v{ACC+2}, v{ACC+3}")
    a(f"ds_write_b64 v17, {vr(ACC+4,2)}")
    signal(C_3, guard=True)
    stamp(7)
    endpath()
    a("L_p1b_single:")
    for kb in range(8):
        a(f"v_mfma_f32_16x16x32_bf16 {vr(ACC,4)}, {vr(AF+4*kb,4)}, {vr(BF+4*kb,4)}, {vr(ACC,4) if kb else 0}")
    for r in range(4): a(f"v_min_u32 v{ACC+r}, -2, v{ACC+r}")
    a("s_cbranch_execz L_sk3")
    a(f"buffer_store_dwordx4 {vr(ACC,4)}, v{vPub}, {srd(SWS)}, s54 offen sc1")
    signal(C_2)
    stamp(5)
    a("L_sk3:")
    poll([f"buffer_load_dwordx4 {vr(G+4*i,4)}, v{vLin}, {srd(SWS)}, s50 offen offset:{1024*i} sc1" for i in range(4)], 16)
    stamp(6)
    for i in range(1, 4):
        for h2 in range(2):
            a(f"v_pk_add_f32 {vr(G+2*h2,2)}, {vr(G+2*h2,2)}, {vr(G+4*i+2*h2,2)}")
    a(f"v_permlane32_swap_b32 v{G}, v{G+2}\nv_permlane32_swap_b32 v{G+1}, v{G+3}")
    a(f"v_pk_add_f32 {vr(G,2)}, {vr(G,2)}, {vr(G+2,2)}")
    a(f"v_cvt_pk_bf16_f32 v{G+4}, v{G}, v{G+1}")
    a(f"v_min_u32 v{G+4}, -2, v{G+4}\nv_mov_b32 v{G+5}, v{G+4}")
    a(f"v_permlane32_swap_b32 v{G+4}, v{G+5}")
    a("s_cbranch_execz L_sk4")
    a(f"s_mov_b32 s52, -1\ns_mov_b32 s53, 0\ns_mov_b64 exec, s[52:53]")
    a(f"buffer_store_dwordx2 {vr(G+4,2)}, v18, {srd(SWS)}, s51 offen sc1")
    a("s_mov_b64 exec, -1")
    a("L_sk4:")
    stamp(7)
    endpath()

    a("L_phi:")
    read_frags(FR, vA0, vA1)
    read_frags(OMF, vOA0, vOA1)
    a(f"v_mov_b32 v{SQa}, 0\nv_mov_b32 v{SQa+1}, 0")
    T = TMP
    for d0 in range(0, 24, 4):
        a(f"s_waitcnt lgkmcnt({11-d0//4})")
        for k in range(4):
            a(f"v_lshlrev_b32 v{T+2*k}, 16, v{FR+d0+k}\nv_and_b32 v{T+2*k+1}, s46, v{FR+d0+k}")
        for k in range(4):
            a(f"v_pk_mul_f32 {vr(T+2*k,2)}, {vr(T+2*k,2)}, s[44:45]")
        for k in range(4):
            a(f"v_cvt_pk_bf16_f32 v{FR+d0+k}, v{T+2*k}, v{T+2*k+1}")
        for k in range(4):
            a(f"v_dot2c_f32_bf16 v{SQa+(k&1)}, v{FR+d0+k}, v{FR+d0+k}")
    a("s_cmp_ge_u32 s3, 8\ns_waitcnt lgkmcnt(0)")
    a(f"v_add_f32 v{SQa}, v{SQa}, v{SQa+1}")
    a("s_cbranch_scc1 L_phi_q")
    a(f"v_mfma_f32_16x16x4_f32 {vr(S,4)}, v{SQa}, v{vOne}, 0")
    for j in range(6):
        a(f"v_mfma_f32_16x16x32_bf16 {vr(P,4)}, {vr(FR+4*j,4)}, {vr(OMF+4*j,4)}, {vr(P,4) if j else 0}")
    a("s_branch L_phi_j")
    a("L_phi_q:")
    a(f"v_mfma_f32_16x16x4_f32 {vr(S,4)}, v{vOne}, v{SQa}, 0")
    for j in range(6):
        a(f"v_mfma_f32_16x16x32_bf16 {vr(P,4)}, {vr(OMF+4*j,4)}, {vr(FR+4*j,4)}, {vr(P,4) if j else 0}")
    a("L_phi_j:")
    for r in range(4): a(f"v_cvt_pk_bf16_f32 v{S+r}, 0, v{S+r}")
    for r in range(4): a(f"v_cvt_pk_bf16_f32 v{P+r}, 0, v{P+r}")
    for r in range(4): a(f"v_fma_f32 v{T+r}, v{S+r}, -0.5, v{P+r}")
    for r in range(4): a(f"v_cvt_pk_bf16_f32 v{T+r}, 0, v{T+r}")
    for r in range(4): a(f"v_mul_f32 v{T+r}, 0x3fb8aa3b, v{T+r}")
    for r in range(4): a(f"v_exp_f32 v{T+r}, v{T+r}")
    for r in range(4): a(f"v_cvt_pk_bf16_f32 v{T+r}, 0, v{T+r}")
    for r in range(4): a(f"v_mul_f32 v{T+r}, 0x3e800000, v{T+r}")
    for r in range(4): a(f"v_add_f32 v{T+r}, 0x358637bd, v{T+r}")
    a(f"v_cvt_pk_bf16_f32 v{RES}, v{T}, v{T+1}\nv_cvt_pk_bf16_f32 v{RES+1}, v{T+2}, v{T+3}")
    a("s_setpc_b64 s[64:65]")
    a.hist = []

    a("L_out:")
    a(f"ds_read_b64 {vr(ZB,2)}, v{vZa}")
    for i in range(6): a(f"ds_read_b128 {vr(KB+4*i,4)}, v{vLin} offset:{LDS_KVF+1024*i}")
    def acc(t): return (68+4*t) if t < 6 else (20+4*(t-6))
    DN = TMP; RD = TMP+4
    a("s_waitcnt lgkmcnt(6)")
    a(f"v_mfma_f32_16x16x16_bf16 {vr(DN,4)}, {vr(RES,2)}, {vr(ZB,2)}, 0")
    for t in range(12):
        if t % 2 == 0: a(f"s_waitcnt lgkmcnt({5-t//2})")
        a(f"v_mfma_f32_16x16x16_bf16 {vr(acc(t),4)}, {vr(RES,2)}, {vr(KB+2*t,2)}, 0")
    for r in range(4): a(f"v_cvt_pk_bf16_f32 v{DN+r}, 0, v{DN+r}")
    for r in range(4): a(f"v_add_f32 v{DN+r}, 0x358637bd, v{DN+r}")
    for r in range(4): a(f"v_cvt_pk_bf16_f32 v{DN+r}, 0, v{DN+r}")
    for r in range(4): a(f"v_rcp_f32 v{RD+r}, v{DN+r}")
    def scale_t(t):
        if round_num:
            for r in range(4): a(f"v_cvt_pk_bf16_f32 v{acc(t)+r}, 0, v{acc(t)+r}")
        for h2 in range(2):
            a(f"v_pk_mul_f32 {vr(acc(t)+2*h2,2)}, {vr(acc(t)+2*h2,2)}, {vr(RD+2*h2,2)}")
    for t in range(8): scale_t(t)
    for r in range(4):
        for p in range(4): a(f"v_cvt_pk_bf16_f32 v{KB+4*r+p}, v{acc(2*p)+r}, v{acc(2*p+1)+r}")
    a("s_cbranch_execz L_out_s1")
    for r in range(4):
        a(f"buffer_store_dwordx4 {vr(KB+4*r,4)}, v{vO4}, {srd(SOUT)}, s52 offen offset:{384*r} {st}")
    a("L_out_s1:")
    for t in range(8, 12): scale_t(t)
    for r in range(4):
        for p in range(2): a(f"v_cvt_pk_bf16_f32 v{KB+16+2*r+p}, v{acc(8+2*p)+r}, v{acc(9+2*p)+r}")
    a("s_cbranch_execz L_out_s2")
    for r in range(4):
        a(f"buffer_store_dwordx2 {vr(KB+16+2*r,2)}, v{vO2}, {srd(SOUT)}, s52 offen offset:{384*r} {st}")
    a("L_out_s2:")
    a("s_nop 1")
    a("s_setpc_b64 s[64:65]")
    a.hist = []

    a("L_qwave:")
    a("s_setprio 1")
    a("s_cmp_lg_u32 s39, 0\ns_cbranch_scc1 L_q_noz")
    a(f"v_lshlrev_b32 v16, 2, v{vLane}\nv_and_b32 v16, 60, v16\nv_add_u32 v16, {LDS_CNT}, v16\nv_mov_b32 v17, 0\nds_write_b32 v16, v17\ns_waitcnt lgkmcnt(0)")
    a("L_q_noz:")
    a("s_barrier")
    common_addrs()
    vSc = 14
    a(f"v_lshrrev_b32 v{vT}, 4, v{vLane}\nv_mul_u32_u24 v{vO4}, 1536, v{vT}")
    a(f"v_lshlrev_b32 v{vZa}, 3, v{vT}\nv_add_u32 v{vZa}, {LDS_Z}, v{vZa}")
    a(f"v_and_b32 v{vT}, 15, v{vLane}\nv_lshl_add_u32 v{vO2}, v{vT}, 3, v{vO4}\nv_add_u32 v{vO2}, 256, v{vO2}")
    a(f"v_lshl_add_u32 v{vO4}, v{vT}, 4, v{vO4}")
    a(f"s_mul_i32 s43, s39, 12288")
    if LDS_V: a(f"s_add_u32 s43, s43, {LDS_V}")
    a("s_add_u32 s50, s40, 4096\ns_add_u32 s51, s40, 8192\ns_mov_b32 s52, s40")
    stamp(1)
    dma_tile(SV, "s40", "s43", 12, ld)
    a("s_setprio 0")
    stamp(2)
    def qload(i):
        a(f"buffer_load_dwordx4 {vr(LAND+4*i,4)}, v{vOff[i%3]}, {srd(SQ)}, s{(40,50,51)[i>>2]} offen offset:{1024*(i&3)} {ld}")
    issued = 0
    for i in range(qdepth): qload(i); issued += 1
    stamp(3)
    a(f"s_waitcnt vmcnt({qdepth})")
    signal(C_1)
    stamp(4)
    nst = 0
    def wait_load(i):
        a(f"s_waitcnt vmcnt({issued-1-i+nst})")
    for i in range(6):
        wait_load(i)
        if issued < 12: qload(issued); issued += 1
    wait_cnt(C_1, 16)
    stamp(5)
    for i in range(6): a(f"ds_write_b128 v{vSc}, {vr(LAND+4*i,4)} offset:{1024*i}")
    a("s_call_b64 s[64:65], L_phi")
    stamp(10)
    i = 6
    while issued < 12:
        wait_load(i); qload(issued); issued += 1; i += 1
    wait_cnt(C_3, 5)
    stamp(6)
    a("s_call_b64 s[64:65], L_out")
    nst = 8
    stamp(11)
    wait_load(11)
    stamp(7)
    for i in range(6): a(f"ds_write_b128 v{vSc}, {vr(LAND+24+4*i,4)} offset:{1024*i}")
    a("s_add_u32 s52, s40, 6144")
    a("s_call_b64 s[64:65], L_phi")
    a("s_nop 1")
    a("s_call_b64 s[64:65], L_out")
    stamp(12)
    a("L_fin:")
    if stamps:
        a("s_mov_b64 exec, -1")
        a("s_waitcnt vmcnt(0)")
        stamp(8)
        a(f"v_writelane_b32 v{vStamp}, s62, 9")
        a(f"s_lshl_b32 s42, s2, 4\ns_add_u32 s42, s42, s3\ns_lshl_b32 s42, s42, 6\ns_add_u32 s42, s42, {STAMP_BASE}")
        a(f"v_lshlrev_b32 v{vT}, 2, v{vLane}\ns_mov_b64 exec, 0xffff")
        a(f"buffer_store_dword v{vStamp}, v{vT}, {srd(SWS)}, s42 offen")
    a("L_end:")
    a("s_endpgm")
    assert a.maxv < 128, a.maxv
    a.raw('.section .rodata,"a"'); a.raw(".p2align 6"); a.raw(f".amdhsa_kernel {KN}")
    a.raw("  .amdhsa_next_free_vgpr 128"); a.raw("  .amdhsa_next_free_sgpr 72"); a.raw("  .amdhsa_accum_offset 128")
    a.raw("  .amdhsa_group_segment_fixed_size 0"); a.raw("  .amdhsa_kernarg_size 56"); a.raw("  .amdhsa_user_sgpr_count 2")
    a.raw("  .amdhsa_user_sgpr_kernarg_segment_ptr 1"); a.raw("  .amdhsa_system_sgpr_workgroup_id_x 1")
    a.raw("  .amdhsa_float_denorm_mode_32 3")
    a.raw(".end_amdhsa_kernel")
    return a.text()

if __name__ == "__main__":
    open("k2.s", "w").write(gen())
    open("k2_st.s", "w").write(gen(stamps=True))
```
